```python
import torch

def _softmax(x, axis=-1):
    return torch.softmax(x, dim=axis)
def _gelu(x):
    return torch.nn.functional.gelu(x, approximate="tanh")
def _silu(x):
    return torch.nn.functional.silu(x)
def _sigmoid(x):
    return torch.sigmoid(x)
def _layernorm(x, axis=-1, eps=1e-5):
    m = x.mean(dim=axis, keepdim=True)
    v = x.var(dim=axis, keepdim=True, unbiased=False)
    return (x - m) / torch.sqrt(v + eps)
def _scatter_add(tgt, idx, src, axis=0):
    return tgt.clone().index_add_(axis, idx, src)
def _segment_sum(src, seg, n):
    out = torch.zeros((n,) + src.shape[1:], dtype=src.dtype)
    return out.index_add_(0, seg, src)
def _pad(x, pw):
    flat = tuple(v for pair in reversed(pw) for v in pair)
    return torch.nn.functional.pad(x, flat)

kernel_name = 'standalone__glu_gated_glu__prompt'

def setup_inputs():

    _w = (lambda a: (lambda t: t.to(torch.bfloat16) if t.is_floating_point() else t)(torch.as_tensor(a)))
    B, S, D, F = 1, 2048, 640, 1536
    return {
        "x": _w((lambda *s: torch.randn(*s, dtype=torch.bfloat16) * 0.2)(B, S, D)),
        "w_gate": _w((lambda *s: torch.randn(*s, dtype=torch.bfloat16) * 0.2)(D, F)),
        "w_up": _w((lambda *s: torch.randn(*s, dtype=torch.bfloat16) * 0.05)(D, F)),
        "w_down": _w((lambda *s: torch.randn(*s, dtype=torch.bfloat16) * 0.05)(F, D)),
    }

def reference(x, w_gate, w_up, w_down):
    g = torch.einsum("bsd,df->bsf", x, w_gate)
    u = torch.einsum("bsd,df->bsf", x, w_up)
    h = _sigmoid(g) * u
    return torch.einsum("bsf,fd->bsd", h, w_down)
```

```python
class Asm:
    def __init__(self):
        self.lines = []
        self.nlabel = 0
    def __call__(self, s, *a):
        if a: s = s % a
        for l in s.split("\n"):
            self.lines.append("    " + l.strip() if not l.strip().endswith(":") else l.strip())
    def label(self, name):
        self.lines.append(name + ":")
    def newlabel(self, base="L"):
        self.nlabel += 1
        return "%s_%d" % (base, self.nlabel)
    def comment(self, s):
        self.lines.append("    ; " + s)
    def text(self):
        return "\n".join(self.lines) + "\n"

HEADER = """; Kernarg layout for this problem (56 bytes, ptrs only, base s[0:1]):
"""

def kernel_wrap(name, body, vgpr, sgpr=102, accum=None):
    if accum is None: accum = min(256, (vgpr + 3) // 4 * 4)
    return f""".text
.globl {name}
.p2align 8
.type {name},@function
{name}:
{body}
.section .rodata,"a"
.p2align 6
.amdhsa_kernel {name}
  .amdhsa_next_free_vgpr {vgpr}
  .amdhsa_next_free_sgpr {sgpr}
  .amdhsa_accum_offset {accum}
  .amdhsa_group_segment_fixed_size 0
  .amdhsa_kernarg_size 56
  .amdhsa_user_sgpr_count 2
  .amdhsa_user_sgpr_kernarg_segment_ptr 1
  .amdhsa_system_sgpr_workgroup_id_x 1
.end_amdhsa_kernel
"""

def file_wrap(launches, kernels):
    s = HEADER
    for (n, g, b, l) in launches:
        s += f"; @launch kernel={n} grid=({g},1,1) block=({b},1,1) lds={l}\n"
    s += '.amdgcn_target "amdgcn-amd-amdhsa--gfx950"\n'
    for k in kernels: s += k
    return s
```

```python
import sys
from asmlib import *

S, D, F = 2048, 640, 1536
H_OFF = 0
WP_OFF = 8 << 20
ST_OFF = 16 << 20
SLOT = 40960

def srd(a, d, p, nbytes, off=0):
    if off:
        a("s_add_u32 s%d, s%d, %d", d, p, off); a("s_addc_u32 s%d, s%d, 0", d+1, p+1); a("s_and_b32 s%d, s%d, 0xffff", d+1, d+1)
    else:
        a("s_mov_b32 s%d, s%d", d, p); a("s_and_b32 s%d, s%d, 0xffff", d+1, p+1)
    a("s_mov_b32 s%d, %d", d+2, nbytes); a("s_mov_b32 s%d, 0x20000", d+3)

def gen_k1(name, stamps=False):
    a = Asm()
    a("s_cmp_ge_u32 s2, 256")
    a("s_cbranch_scc1 L_end_%s", name)
    a("s_load_dwordx4 s[4:7], s[0:1], 0")
    a("s_load_dwordx4 s[8:11], s[0:1], 16")
    a("s_load_dwordx2 s[12:13], s[0:1], 48")
    a("v_lshrrev_b32 v1, 6, v0")
    a("v_and_b32 v2, 63, v0")
    a("v_readfirstlane_b32 s19, v1")
    a("s_and_b32 s14, s2, 7"); a("s_lshr_b32 s15, s2, 3")
    a("s_and_b32 s16, s14, 1"); a("s_lshl_b32 s16, s16, 3"); a("s_and_b32 s17, s15, 7"); a("s_add_u32 s16, s16, s17")
    a("s_lshr_b32 s17, s14, 1"); a("s_lshl_b32 s17, s17, 2"); a("s_lshr_b32 s18, s15, 3"); a("s_add_u32 s17, s17, s18")
    a("s_cmp_lt_u32 s19, 4")
    a("s_cbranch_scc1 L_comp_%s", name)
    a("s_sub_u32 s19, s19, 4")
    a("v_lshrrev_b32 v3, 3, v2"); a("v_and_b32 v4, 7, v2")
    a("v_lshrrev_b32 v5, 1, v3")
    a("s_lshl_b32 s32, s16, 7"); a("s_lshl_b32 s33, s19, 5"); a("s_add_u32 s32, s32, s33")
    a("v_add_u32 v3, s32, v3")
    a("v_mul_u32_u24 v3, 1280, v3")
    a("v_xor_b32 v6, v4, v5")
    a("v_xor_b32 v7, 4, v6")
    a("v_lshl_add_u32 v10, v6, 4, v3")
    a("v_lshl_add_u32 v11, v7, 4, v3")
    a("v_add_u32 v12, %d, v10", 2*8*1280 - 2048)
    a("v_add_u32 v13, %d, v11", 3*8*1280 - 3072)
    a("v_add_u32 v11, %d, v11", 1*8*1280 - 1024)
    a("s_mul_i32 s34, s17, 192")
    a("s_mul_i32 s35, s19, 192")
    for i in range(3):
        a("s_add_u32 s36, s35, %d", 64*i)
        a("v_add_u32 v5, s36, v2")
        a("v_mul_u32_u24 v6, 43691, v5"); a("v_lshrrev_b32 v6, 19, v6")
        a("v_mul_u32_u24 v7, 12, v6"); a("v_sub_u32 v7, v5, v7")
        a("v_mul_u32_u24 v6, 3072, v6")
        a("s_sub_u32 s36, s34, %d", 1024*i) if i else a("s_mov_b32 s36, s34")
        a("v_add_u32 v6, s36, v6")
        a("v_lshl_add_u32 v%d, v7, 4, v6", 14+i)
        a("v_xor_b32 v7, 2, v7")
        a("v_lshl_add_u32 v%d, v7, 4, v6", 17+i)
    a("s_lshl_b32 s37, s19, 12")
    a("s_mul_i32 s38, s19, 3072")
    a("s_add_u32 s38, s38, 16384")
    a("s_add_u32 s39, s38, 12288")
    a("s_waitcnt lgkmcnt(0)")
    srd(a, 20, 4, S*D*2); srd(a, 24, 6, D*F*2); srd(a, 28, 8, D*F*2)
    a("s_mov_b32 s40, 0")
    a("s_mov_b32 s41, 0")
    a("s_mov_b32 s42, 0")
    a.label("L_ld_%s" % name)
    a("s_cmp_lt_u32 s40, %d", 3*128)
    a("s_cbranch_scc1 L_ld_issue_%s", name)
    a("s_waitcnt vmcnt(20)")
    a("s_barrier")
    a.label("L_ld_issue_%s" % name)
    a("s_add_u32 m0, s42, s37")
    a("s_add_u32 s43, s42, s38")
    for i in range(4):
        a("buffer_load_dwordx4 v%d, s[20:23], s40 offen offset:%d lds", 10+i, 1024*i)
    a("s_mov_b32 m0, s43")
    a("s_add_u32 s43, s42, s39")
    for i in range(3):
        a("buffer_load_dwordx4 v%d, s[24:27], s41 offen offset:%d lds", 14+i, 1024*i)
    a("s_mov_b32 m0, s43")
    a("s_add_u32 s42, s42, %d", SLOT)
    for i in range(3):
        a("buffer_load_dwordx4 v%d, s[28:31], s41 offen offset:%d lds", 17+i, 1024*i)
    a("s_cmp_eq_u32 s42, %d", 4*SLOT)
    a("s_cselect_b32 s42, 0, s42")
    a("s_add_u32 s40, s40, 128")
    a("s_add_u32 s41, s41, %d", 64*3072)
    a("s_cmp_lt_u32 s40, 1280")
    a("s_cbranch_scc1 L_ld_%s", name)
    a("s_waitcnt vmcnt(20)"); a("s_barrier")
    a("s_waitcnt vmcnt(10)"); a("s_barrier")
    a("s_waitcnt vmcnt(0)"); a("s_barrier")
    a("s_endpgm")
    a.label("L_comp_%s" % name)
    ACC = 64
    BX, BY = 16, 36
    AA = 56
    a("s_lshr_b32 s32, s19, 1")
    a("s_and_b32 s33, s19, 1")
    a("s_lshl_b32 s34, s16, 4"); a("s_add_u32 s34, s34, s17")
    a("s_waitcnt lgkmcnt(0)")
    srd(a, 20, 10, F*D*2)
    srd(a, 24, 12, 8*48*5*1024, WP_OFF)
    srd(a, 28, 12, S*F*2, H_OFF)
    a("s_cmp_ge_u32 s34, 240")
    a("s_cbranch_scc1 L_nopack_%s", name)
    a("s_cmp_ge_u32 s19, 2")
    a("s_cbranch_scc1 L_nopack_%s", name)
    a("s_mul_i32 s35, s34, 2731"); a("s_lshr_b32 s35, s35, 16")
    a("s_mul_i32 s36, s35, 24"); a("s_sub_u32 s36, s34, s36"); a("s_lshl_b32 s36, s36, 1"); a("s_add_u32 s36, s36, s19")
    a("v_lshrrev_b32 v3, 3, v2"); a("v_and_b32 v4, 7, v2")
    a("v_mul_u32_u24 v3, 1280, v3"); a("v_lshl_add_u32 v3, v4, 4, v3")
    a("s_mul_i32 s37, s36, %d", 32*1280); a("s_lshl_b32 s38, s35, 7"); a("s_add_u32 s37, s37, s38")
    a("s_lshl_b32 s38, s19, 12"); a("s_add_u32 s38, s38, %d", 3*SLOT)
    a("s_mov_b32 m0, s38")
    a("s_nop 0")
    for i in range(4):
        if i: a("s_add_u32 s37, s37, %d", 8*1280 - 1024)
        a("buffer_load_dwordx4 v3, s[20:23], s37 offen offset:%d lds", 1024*i)
    a("v_lshrrev_b32 v4, 4, v2"); a("v_lshlrev_b32 v4, 10, v4")
    a("v_bfe_u32 v5, v2, 2, 2"); a("v_lshl_add_u32 v4, v5, 7, v4")
    a("v_and_b32 v5, 3, v2"); a("v_lshl_add_u32 v4, v5, 3, v4")
    a("v_add_u32 v4, s38, v4")
    a("v_lshlrev_b32 v5, 4, v2")
    a("s_waitcnt vmcnt(0)")
    for dbp in range(4):
        for hh in range(2):
            a("ds_read_b64_tr_b16 v[%d:%d], v4 offset:%d", BX+4*dbp+2*hh, BX+4*dbp+2*hh+1, dbp*32 + hh*512)
    for dbp in range(4):
        a("s_lshl_b32 s39, s35, 2"); a("s_add_u32 s39, s39, %d", dbp)
        a("s_mul_i32 s40, s39, 13108"); a("s_lshr_b32 s40, s40, 16")
        a("s_mul_i32 s41, s40, 5"); a("s_sub_u32 s41, s39, s41")
        a("s_mul_i32 s40, s40, 48"); a("s_add_u32 s40, s40, s36"); a("s_mul_i32 s40, s40, 5"); a("s_add_u32 s40, s40, s41")
        a("s_lshl_b32 s40, s40, 10")
        a("s_waitcnt lgkmcnt(%d)", 6-2*dbp)
        a("buffer_store_dwordx4 v[%d:%d], v5, s[24:27], s40 offen", BX+4*dbp, BX+4*dbp+3)
    a.label("L_nopack_%s" % name)
    a("v_and_b32 v3, 31, v2"); a("v_lshrrev_b32 v4, 5, v2")
    a("v_bfe_u32 v5, v2, 1, 3")
    a("v_xor_b32 v5, v5, v4")
    a("s_lshl_b32 s35, s32, 13")
    a("v_lshlrev_b32 v3, 7, v3"); a("v_add_u32 v3, s35, v3")
    for kk in range(4):
        a("v_xor_b32 v6, %d, v5", 2*kk)
        a("v_lshl_add_u32 v%d, v6, 4, v3", AA+kk)
    a("v_bfe_u32 v3, v2, 4, 1")
    a("v_bfe_u32 v5, v2, 2, 2")
    a("v_lshl_add_u32 v5, v4, 3, v5")
    a("v_mul_u32_u24 v5, 192, v5")
    a("v_mul_u32_u24 v6, 12288, v3")
    a("v_add_u32 v5, v5, v6")
    a("v_and_b32 v6, 1, v2"); a("v_lshl_add_u32 v5, v6, 4, v5")
    a("v_bfe_u32 v6, v2, 1, 1"); a("v_lshl_add_u32 v5, v6, 3, v5")
    a("v_add_u32 v5, 16384, v5")
    a("s_mul_i32 s35, s33, 3")
    for t in range(3):
        a("s_add_u32 s36, s35, %d", t)
        a("v_xor_b32 v6, s36, v3")
        a("v_lshl_add_u32 v%d, v6, 5, v5", AA+4+t)
    for r in range(96):
        a("v_mov_b32 v%d, 0", ACC+r)
    def reads(buf, kk):
        l = []
        for t in range(3):
            for hh in range(2):
                l.append("ds_read_b64_tr_b16 v[%d:%d], v%d offset:%d" % (buf+4*t+2*hh, buf+4*t+2*hh+1, AA+4+t, (16*kk+4*hh)*192))
        for s in range(2):
            l.append("ds_read_b128 v[%d:%d], v%d offset:%d" % (buf+12+4*s, buf+12+4*s+3, AA+kk, s*4096))
        return [l[6], l[0], l[1], l[7], l[2], l[3], l[4], l[5]]
    def mfmas(buf):
        l = []
        for t in range(3):
            for s in range(2):
                c = ACC + 16*(2*t+s)
                l.append("v_mfma_f32_32x32x16_bf16 v[%d:%d], v[%d:%d], v[%d:%d], v[%d:%d]" % (c, c+15, buf+4*t, buf+4*t+3, buf+12+4*s, buf+12+4*s+3, c, c+15))
        return l
    def step(cur, rd):
        m = mfmas(cur)
        for i in range(6):
            a(m[i])
            if i < 4:
                for x in rd[2*i:2*i+2]: a(x)
    a("s_mov_b32 s40, 0")
    a("s_mov_b32 s41, 0")
    a("s_mov_b32 s43, %d", (-3*SLOT) & 0xffffffff)
    a("s_waitcnt lgkmcnt(0)")
    a("s_barrier")
    for x in reads(BX, 0): a(x)
    a.label("L_cl_%s" % name)
    a("s_waitcnt lgkmcnt(0)"); step(BX, reads(BY, 1))
    a("s_waitcnt lgkmcnt(0)"); step(BY, reads(BX, 2))
    a("s_waitcnt lgkmcnt(0)"); step(BX, reads(BY, 3))
    a("s_add_u32 s40, s40, 1")
    a("s_cmp_eq_u32 s40, 10")
    a("s_cbranch_scc1 L_cend_%s", name)
    a("s_add_u32 s41, s41, %d", SLOT)
    a("s_cmp_eq_u32 s41, %d", 4*SLOT)
    a("s_cselect_b32 s41, 0, s41")
    a("s_cselect_b32 s42, s43, %d", SLOT)
    for i in range(7):
        a("v_add_u32 v%d, s42, v%d", AA+i, AA+i)
    a("s_waitcnt lgkmcnt(0)")
    a("s_barrier")
    step(BY, reads(BX, 0))
    a("s_branch L_cl_%s", name)
    a.label("L_cend_%s" % name)
    a("s_waitcnt lgkmcnt(0)")
    for x in mfmas(BY): a(x)
    a("v_bfe_u32 v3, v2, 4, 1"); a("v_lshlrev_b32 v3, 10, v3")
    a("v_lshl_add_u32 v3, v4, 8, v3")
    a("v_and_b32 v5, 15, v2"); a("v_lshl_add_u32 v3, v5, 4, v3")
    a("s_lshl_b32 s36, s16, 1"); a("s_add_u32 s36, s36, s32"); a("s_mul_i32 s36, s36, %d", 48*4096)
    a("s_mul_i32 s37, s17, 6"); a("s_add_u32 s37, s37, s35")
    a("s_mov_b32 s44, 0xbfb8aa3b"); a("s_mov_b32 s45, 0xbfb8aa3b")
    a("s_nop 7")
    for t in range(3):
        a("s_add_u32 s38, s37, %d", t)
        a("s_lshr_b32 s39, s38, 1"); a("s_lshl_b32 s39, s39, 12")
        a("s_and_b32 s38, s38, 1"); a("s_lshl_b32 s38, s38, 9")
        a("s_add_u32 s38, s38, s39"); a("s_add_u32 s38, s38, s36")
        for s in range(2):
            c = ACC + 16*(2*t+s)
            for r in range(0, 8, 2):
                a("v_pk_mul_f32 v[%d:%d], v[%d:%d], s[44:45]", c+r, c+r+1, c+r, c+r+1)
            for r in range(8): a("v_exp_f32 v%d, v%d", c+r, c+r)
            for r in range(8): a("v_add_f32 v%d, 1.0, v%d", c+r, c+r)
            for r in range(8): a("v_rcp_f32 v%d, v%d", c+r, c+r)
            a("s_nop 0")
            for r in range(0, 8, 2):
                a("v_pk_mul_f32 v[%d:%d], v[%d:%d], v[%d:%d]", c+r, c+r+1, c+r, c+r+1, c+8+r, c+8+r+1)
            for e in range(4):
                a("v_cvt_pk_bf16_f32 v%d, v%d, v%d", c+8+e, c+2*e, c+2*e+1)
            a("buffer_store_dwordx4 v[%d:%d], v3, s[28:31], s38 offen offset:%d", c+8, c+11, 2048*s)
    a.label("L_end_%s" % name)
    a("s_endpgm")
    return kernel_wrap(name, a.text(), 160)

def gen_k2(name):
    a = Asm()
    a("s_cmp_ge_u32 s2, 256")
    a("s_cbranch_scc1 L_end_%s", name)
    a("s_load_dwordx2 s[4:5], s[0:1], 32")
    a("s_load_dwordx2 s[12:13], s[0:1], 48")
    a("v_lshrrev_b32 v1, 6, v0")
    a("v_and_b32 v2, 63, v0")
    a("s_nop 0")
    a("v_readfirstlane_b32 s19, v1")
    a("s_and_b32 s14, s2, 7"); a("s_lshr_b32 s15, s2, 3")
    a("s_and_b32 s16, s14, 3"); a("s_lshl_b32 s16, s16, 3"); a("s_and_b32 s17, s15, 7"); a("s_add_u32 s16, s16, s17")
    a("s_lshr_b32 s17, s14, 2"); a("s_lshl_b32 s17, s17, 2"); a("s_lshr_b32 s18, s15, 3"); a("s_add_u32 s17, s17, s18")
    a("v_lshlrev_b32 v3, 4, v2")
    WV, HV, ACC = 16, 96, 160
    a("s_mul_i32 s32, s19, 12")
    a("s_mul_i32 s33, s17, 48"); a("s_add_u32 s33, s33, s32"); a("s_mul_i32 s33, s33, 5120")
    a("s_mul_i32 s34, s16, 48"); a("s_add_u32 s34, s34, s32"); a("s_lshl_b32 s34, s34, 12")
    a("s_mul_i32 s35, s19, %d", SLOT)
    a("s_waitcnt lgkmcnt(0)")
    srd(a, 20, 12, 8*48*5*1024, WP_OFF)
    srd(a, 24, 12, S*F*2, H_OFF)
    srd(a, 28, 4, S*D*2)
    for n in range(4):
        for db in range(5):
            if db == 4:
                a("s_add_u32 s36, s33, 4096")
                a("buffer_load_dwordx4 v[%d:%d], v3, s[20:23], s36 offen", WV+20*n+4*db, WV+20*n+4*db+3)
            else:
                a("buffer_load_dwordx4 v[%d:%d], v3, s[20:23], s33 offen offset:%d", WV+20*n+4*db, WV+20*n+4*db+3, 1024*db)
        a("s_add_u32 s33, s33, 5120")
        for mb in range(4):
            a("buffer_load_dwordx4 v[%d:%d], v3, s[24:27], s34 offen offset:%d", HV+16*n+4*mb, HV+16*n+4*mb+3, 1024*mb)
        a("s_add_u32 s34, s34, 4096")
    a("s_mov_b32 s36, s35")
    a("s_add_u32 s37, s35, %d", SLOT)
    a.label("L_wl_%s" % name)
    a("s_mov_b32 m0, s36")
    a("s_add_u32 s36, s36, 4096")
    for i in range(4):
        a("buffer_load_dwordx4 v3, s[20:23], s33 offen offset:%d lds", 1024*i)
    a("s_add_u32 s33, s33, 4096")
    a("s_waitcnt vmcnt(56)")
    a("s_cmp_lt_u32 s36, s37")
    a("s_cbranch_scc1 L_wl_%s", name)
    for r in range(80): a("v_mov_b32 v%d, 0", ACC+r)
    a("v_add_u32 v4, s35, v3")
    a("s_waitcnt vmcnt(0)")
    a("s_mov_b32 s38, 0")
    a.label("L_ml_%s" % name)
    for n in range(4):
        a("s_waitcnt vmcnt(12) lgkmcnt(15)") if n else a("s_waitcnt vmcnt(12) lgkmcnt(15)")
        for db in range(5):
            for mb in range(4):
                c = ACC + 4*(db*4+mb)
                a("v_mfma_f32_16x16x32_bf16 v[%d:%d], v[%d:%d], v[%d:%d], v[%d:%d]", c, c+3, WV+20*n+4*db, WV+20*n+4*db+3, HV+16*n+4*mb, HV+16*n+4*mb+3, c, c+3)
        for db in range(5):
            a("ds_read_b128 v[%d:%d], v4 offset:%d", WV+20*n+4*db, WV+20*n+4*db+3, (n*5+db)*1024)
        for mb in range(4):
            a("buffer_load_dwordx4 v[%d:%d], v3, s[24:27], s34 offen offset:%d", HV+16*n+4*mb, HV+16*n+4*mb+3, 1024*mb)
        a("s_add_u32 s34, s34, 4096")
    a("v_add_u32 v4, 20480, v4")
    a("s_add_u32 s38, s38, 1")
    a("s_cmp_lt_u32 s38, 2")
    a("s_cbranch_scc1 L_ml_%s", name)
    for n in range(4):
        a("s_waitcnt vmcnt(%d) lgkmcnt(%d)", 12-4*n, 15-5*n)
        for db in range(5):
            for mb in range(4):
                c = ACC + 4*(db*4+mb)
                a("v_mfma_f32_16x16x32_bf16 v[%d:%d], v[%d:%d], v[%d:%d], v[%d:%d]", c, c+3, WV+20*n+4*db, WV+20*n+4*db+3, HV+16*n+4*mb, HV+16*n+4*mb+3, c, c+3)
    a("v_add_u32 v4, s35, v3")
    a("s_nop 7")
    for mb in range(4):
        for db in range(5):
            c = ACC + 4*(db*4+mb)
            a("ds_write_b128 v4, v[%d:%d] offset:%d", c, c+3, (mb*5+db)*1024)
    a("s_mul_i32 s36, s19, 5120")
    a("v_add_u32 v5, s36, v3")
    a("v_add_u32 v6, %d, v5", 2*SLOT)
    a("s_waitcnt lgkmcnt(0)")
    a("s_barrier")
    for src in range(4):
        for db in range(5):
            r = WV + 20*src + 4*db
            a("ds_read_b128 v[%d:%d], v%d offset:%d", r, r+3, 5 if src < 2 else 6, (src & 1)*SLOT + db*1024)
    a("v_and_b32 v7, 15, v2"); a("v_mul_u32_u24 v7, 1280, v7")
    a("v_lshrrev_b32 v8, 4, v2"); a("v_lshl_add_u32 v7, v8, 3, v7")
    a("s_lshl_b32 s36, s16, 6"); a("s_lshl_b32 s37, s19, 4"); a("s_add_u32 s36, s36, s37"); a("s_mul_i32 s36, s36, 1280")
    a("s_mul_i32 s37, s17, 160"); a("s_add_u32 s36, s36, s37")
    a("s_waitcnt lgkmcnt(0)")
    for db in range(5):
        r = WV + 4*db
        for src in range(1, 4):
            for e in (0, 2):
                a("v_pk_add_f32 v[%d:%d], v[%d:%d], v[%d:%d]", r+e, r+e+1, r+e, r+e+1, r+20*src+e, r+20*src+e+1)
        a("v_cvt_pk_bf16_f32 v%d, v%d, v%d", r, r, r+1)
        a("v_cvt_pk_bf16_f32 v%d, v%d, v%d", r+1, r+2, r+3)
        a("buffer_store_dwordx2 v[%d:%d], v7, s[28:31], s36 offen offset:%d", r, r+1, 32*db)
    a.label("L_end_%s" % name)
    a("s_endpgm")
    return kernel_wrap(name, a.text(), 240)

if __name__ == "__main__":
    ks = [gen_k1("glu1_kernel"), gen_k2("glu2_kernel")]
    ls = [("glu1_kernel", 256, 512, 163840), ("glu2_kernel", 256, 256, 163840)]
    out = sys.argv[1] if len(sys.argv) > 1 else "v2.s"
    open(out, "w").write(file_wrap(ls, ks))
```

```python
from asmlib import *
ST_OFF = 16 << 20
def stamp_start(a, sreg=90):
    a("s_memrealtime s[%d:%d]", sreg, sreg+1)
    a("s_memtime s[%d:%d]", sreg+2, sreg+3)
def stamp_mid(a, sreg):
    a("s_memrealtime s[%d:%d]", sreg, sreg+1)
def stamp_end(a, ws_s, kidx, extra=(), sreg=90, vtmp=8, lane_v="v2"):
    a("s_memrealtime s[%d:%d]", sreg+4, sreg+5)
    a("s_memtime s[%d:%d]", sreg+6, sreg+7)
    a("s_waitcnt lgkmcnt(0)")
    a("s_sub_u32 s%d, s%d, s%d", sreg+6, sreg+6, sreg+2)
    a("s_lshl_b32 s%d, s2, 5", sreg+8)
    a("s_add_u32 s%d, s%d, %d", sreg+8, sreg+8, ST_OFF + kidx*8192)
    a("v_mov_b32 v%d, s%d", vtmp+8, sreg+8)
    regs = [sreg, sreg+4, sreg+6] + list(extra)
    while len(regs) < 8: regs.append(sreg)
    for j, r in enumerate(regs): a("v_mov_b32 v%d, s%d", vtmp+j, r)
    a("v_cmp_eq_u32 vcc, 0, %s", lane_v)
    a("s_and_saveexec_b64 s[%d:%d], vcc", sreg+10-((sreg+10)&1), sreg+11-((sreg+10)&1))
    a("global_store_dwordx4 v%d, v[%d:%d], s[%d:%d]", vtmp+8, vtmp, vtmp+3, ws_s, ws_s+1)
    a("global_store_dwordx4 v%d, v[%d:%d], s[%d:%d] offset:16", vtmp+8, vtmp+4, vtmp+7, ws_s, ws_s+1)
    a("s_mov_b64 exec, s[%d:%d]", sreg+10-((sreg+10)&1), sreg+11-((sreg+10)&1))

def gen_reporter(name, A, B, mult):
    a = Asm()
    a("s_cmp_ge_u32 s2, 1")
    a("s_cbranch_scc1 L_end_%s", name)
    a("s_load_dwordx2 s[12:13], s[0:1], 48")
    a("v_lshlrev_b32 v1, 5, v0")
    a("s_waitcnt lgkmcnt(0)")
    for idx, spec in enumerate((A, B)):
        dst = 20 + idx
        if spec is None:
            a("s_mov_b32 s%d, 0", dst); continue
        k, f, red = spec
        a("v_add_u32 v2, %d, v1", ST_OFF + k*8192 + f*4)
        for i in range(4):
            a("v_add_u32 v3, %d, v2", i*2048)
            a("global_load_dword v%d, v3, s[12:13]", 4+i)
        a("s_waitcnt vmcnt(0)")
        op = "min" if red == "min" else "max"
        for i in range(1, 4): a("v_%s_u32 v4, v4, v%d", op, 4+i)
        a("s_nop 1")
        a("v_readlane_b32 s%d, v4, 0", dst)
        for l in range(1, 64):
            a("v_readlane_b32 s22, v4, %d", l)
            a("s_nop 0")
            a("s_%s_u32 s%d, s%d, s22", op, dst, dst)
    a("s_sub_u32 s20, s20, s21")
    a("s_mul_i32 s20, s20, %d", mult)
    a("s_min_u32 s20, s20, 100000")
    a("s_memrealtime s[24:25]")
    a("s_waitcnt lgkmcnt(0)")
    a("s_add_u32 s20, s20, s24")
    a.label("L_spin_%s" % name)
    a("s_memrealtime s[26:27]")
    a("s_waitcnt lgkmcnt(0)")
    a("s_sub_u32 s28, s20, s26")
    a("s_cmp_gt_i32 s28, 0")
    a("s_cbranch_scc1 L_spin_%s", name)
    a.label("L_end_%s" % name)
    a("s_endpgm")
    return kernel_wrap(name, a.text(), 16)
```

```python
import sys, importlib
import diag
from asmlib import *
mod = importlib.import_module(sys.argv[1])
st = int(sys.argv[2])
k1 = ("fused_kernel", 256, 512, 163840); kr = ("rep_kernel", 1, 64, 0)
base = [mod.gen(name="fused_kernel", stamps=st)]
specs = {
 "d0": ((0,1,'max'), (0,0,'min'), 0),
 "d1": ((0,1,'max'), (0,0,'min'), 10),
 "d2": ((0,3,'max'), (0,0,'min'), 10),
 "d3": ((0,4,'max'), (0,0,'min'), 10),
 "d4": ((0,5,'max'), (0,0,'min'), 10),
 "d5": ((0,6,'max'), (0,0,'min'), 10),
}
if len(sys.argv) > 3 and sys.argv[3] == "min":
    specs = {k: ((A[0], A[1], 'min'), B, m) for k, (A, B, m) in specs.items()}
for n, (A, B, m) in specs.items():
    open(n + ".s", "w").write(file_wrap([k1, kr], base + [diag.gen_reporter("rep_kernel", A, B, m)]))
```
